```python
import torch

def _softmax(x, axis=-1):
    return torch.softmax(x, dim=axis)

def _gelu(x):
    return torch.nn.functional.gelu(x, approximate='tanh')

def _silu(x):
    return torch.nn.functional.silu(x)

def _sigmoid(x):
    return torch.sigmoid(x)

def _layernorm(x, axis=-1, eps=1e-05):
    m = x.mean(dim=axis, keepdim=True)
    v = x.var(dim=axis, keepdim=True, unbiased=False)
    return (x - m) / torch.sqrt(v + eps)

def _scatter_add(tgt, idx, src, axis=0):
    return tgt.clone().index_add_(axis, idx, src)

def _segment_sum(src, seg, n):
    out = torch.zeros((n,) + src.shape[1:], dtype=src.dtype)
    return out.index_add_(0, seg, src)

def _pad(x, pw):
    flat = tuple((v for pair in reversed(pw) for v in pair))
    return torch.nn.functional.pad(x, flat)
kernel_name = 'adaLN_cond__gqa_block_cached__geglu_ffn__decode'

def setup_inputs():

    _w = lambda a: (lambda t: t.to(torch.bfloat16) if t.is_floating_point() else t)(torch.as_tensor(a))

    def _A_setup():
        B, Sq, D = (1, 1, 512)
        Hq, Hkv, Sk, Dh = (32, 8, 65536, 128)
        assert Hq % Hkv == 0, (Hq, Hkv)
        return {'x': _w((lambda *s: torch.randn(*s, dtype=torch.bfloat16) * 0.05)(B, Sq, D)), 'k_cache': _w((lambda *s: torch.randn(*s, dtype=torch.bfloat16) * 3.2)(B, Hkv, Sk, Dh)), 'v_cache': _w((lambda *s: torch.randn(*s, dtype=torch.bfloat16) * 0.4)(B, Hkv, Sk, Dh)), 'wq': _w((lambda *s: torch.randn(*s, dtype=torch.bfloat16) * 3.2)(D, Hq * Dh) * D ** (-0.5)), 'wo': _w((lambda *s: torch.randn(*s, dtype=torch.bfloat16) * 0.4)(Hq * Dh, D) * (Hq * Dh) ** (-0.5))}
    _A_in = _A_setup()

    def _B_setup():
        B, S, D, F = (1, 1, 512, 1792)
        return {'x': _w((lambda *s: torch.randn(*s, dtype=torch.bfloat16) * 0.05)(B, S, D)), 'w_gate': _w((lambda *s: torch.randn(*s, dtype=torch.bfloat16) * 0.05)(D, F)), 'w_up': _w((lambda *s: torch.randn(*s, dtype=torch.bfloat16) * 0.05)(D, F)), 'w_down': _w((lambda *s: torch.randn(*s, dtype=torch.bfloat16) * 0.05)(F, D))}
    _B_in = _B_setup()
    return {'A_x': _A_in['x'], 'A_k_cache': _A_in['k_cache'], 'A_v_cache': _A_in['v_cache'], 'A_wq': _A_in['wq'], 'A_wo': _A_in['wo'], 'B_x': _B_in['x'], 'B_w_gate': _B_in['w_gate'], 'B_w_up': _B_in['w_up'], 'B_w_down': _B_in['w_down'], 'c': _w((lambda *s: torch.randn(*s, dtype=torch.bfloat16) * 0.2)(1, 512) * 8.0), 'w_mod': _w((lambda *s: torch.randn(*s, dtype=torch.bfloat16) * 0.2)(512, 6 * 512) * 512 ** (-0.5) * 8.0)}

def reference(A_x, A_k_cache, A_v_cache, A_wq, A_wo, B_x, B_w_gate, B_w_up, B_w_down, c, w_mod):

    def _A_ref(x, k_cache, v_cache, wq, wo):
        B, Sq, D = x.shape
        Hq, Dh = (32, 128)
        Hkv = k_cache.shape[1]
        rep = Hq // Hkv
        q = (lambda x, *d: x.permute(*d))((x @ wq).reshape(B, Sq, Hq, Dh), 0, 2, 1, 3)
        k = (lambda x, n, axis: torch.repeat_interleave(x, n, dim=axis))(k_cache, rep, axis=1)
        v = (lambda x, n, axis: torch.repeat_interleave(x, n, dim=axis))(v_cache, rep, axis=1)
        scores = torch.einsum('bhqd,bhkd->bhqk', q, k) * Dh ** (-0.5)
        p = _softmax(scores, axis=-1)
        o = torch.einsum('bhqk,bhkd->bhqd', p, v)
        return (lambda x, *d: x.permute(*d))(o, 0, 2, 1, 3).reshape(B, Sq, Hq * Dh) @ wo

    def _B_ref(x, w_gate, w_up, w_down):
        return _gelu(x @ w_gate) * (x @ w_up) @ w_down
    x = A_x
    mod = (_silu(c) @ w_mod).reshape(c.shape[0], 6, 1, -1)
    sa, ca, ga, sb, cb, gb = (mod[:, 0].clone(), mod[:, 1].clone(), mod[:, 2].clone(), mod[:, 3].clone(), mod[:, 4].clone(), mod[:, 5].clone())
    h = _layernorm(x, axis=-1) * (1 + ca) + sa
    x = x + ga * _A_ref(h, A_k_cache, A_v_cache, A_wq, A_wo)
    h = _layernorm(x, axis=-1) * (1 + cb) + sb
    x = x + gb * _B_ref(h, B_w_gate, B_w_up, B_w_down)
    return x
```

```python
import re, struct

def f32(x):
    return "0x%08x" % struct.unpack("<I", struct.pack("<f", x))[0]

_REG = re.compile(r"^(-|abs\()?\s*([vsa])(\d+)\)?$|^(-)?([vsa])\[(\d+):(\d+)\]$")
TRANS = ("v_exp_f32", "v_log_f32", "v_rcp_f32", "v_rsq_f32", "v_sqrt_f32", "v_sin_f32", "v_cos_f32", "v_rcp_iflag")

def regs_of(op):
    op = op.strip()
    op = op.split(" ")[0]
    if op.startswith("-"): op = op[1:]
    if op.startswith("|"): op = op.strip("|")
    if op.startswith("abs("): op = op[4:-1]
    if op == "vcc": return {("s", 106), ("s", 107)}
    if op == "vcc_lo": return {("s", 106)}
    if op == "vcc_hi": return {("s", 107)}
    if op == "exec": return {("s", 126), ("s", 127)}
    if op == "m0": return {("s", 124)}
    m = re.match(r"^([vsa])(\d+)$", op)
    if m: return {(m.group(1), int(m.group(2)))}
    m = re.match(r"^([vsa])\[(\d+):(\d+)\]$", op)
    if m: return {(m.group(1), i) for i in range(int(m.group(2)), int(m.group(3)) + 1)}
    return set()

class Ins:
    __slots__ = ("mn", "kind", "wr", "rd", "srcc", "dst", "sdata", "dpp", "ws", "lds")

def parse(line):
    t = line.strip()
    parts = t.split(None, 1)
    mn = parts[0]
    rest = parts[1] if len(parts) > 1 else ""
    ops = []; depth = 0; cur = ""
    for ch in rest:
        if ch in "[(": depth += 1
        if ch in "])": depth -= 1
        if ch == "," and depth == 0:
            ops.append(cur.strip()); cur = ""
        else: cur += ch
    if cur.strip(): ops.append(cur.strip())
    I = Ins(); I.mn = mn; I.wr = set(); I.rd = set(); I.srcc = set(); I.dst = set(); I.sdata = set()
    I.dpp = ("_dpp" in mn) or (" row_" in t) or ("quad_perm" in t); I.ws = 1; I.lds = False
    R = [regs_of(o) for o in ops]
    if mn == "s_nop":
        I.kind = "nop"; I.ws = int(ops[0], 0) + 1
    elif mn.startswith("v_mfma"):
        I.kind = "mfma"; I.wr = R[0]; I.dst = R[0]; I.rd = R[1] | R[2]; I.srcc = R[3] if len(R) > 3 else set()
    elif mn.startswith("v_"):
        I.kind = "trans" if mn.startswith(TRANS) else "valu"
        if mn.startswith("v_permlane") and "swap" in mn:
            I.kind = "permlane"; I.wr = R[0] | R[1]; I.rd = R[0] | R[1]
        elif mn.startswith(("v_readlane", "v_readfirstlane")):
            I.kind = "readlane"; I.wr = R[0]; I.rd = set().union(*R[1:])
        elif mn.startswith(("v_add_co", "v_sub_co", "v_addc_co", "v_subb_co", "v_subrev_co", "v_mad_u64", "v_div_scale")):
            I.wr = R[0] | R[1]; I.rd = set().union(*R[2:])
        else:
            I.wr = R[0]; I.rd = set().union(*R[1:]) if len(R) > 1 else set()
            if mn.startswith(("v_fmac", "v_dot2c", "v_pk_fmac", "v_writelane")) or I.dpp: I.rd |= R[0]
            if mn.startswith("v_cmpx"): I.wr |= regs_of("exec")
    elif mn.startswith("ds_"):
        I.kind = "ds"
        if mn.startswith(("ds_read", "ds_bpermute", "ds_permute", "ds_swizzle")) or "_rtn" in mn:
            I.dst = R[0]; I.rd = set().union(*R[1:])
        else:
            I.rd = set().union(*R)
    elif mn.startswith(("buffer_", "global_", "flat_")):
        I.kind = "vmem"
        islds = bool(re.search(r"\blds\b", t)) or "_lds_" in mn
        I.lds = islds
        if "load" in mn and not islds:
            I.dst = R[0]; I.rd = set().union(*R[1:])
        elif "atomic" in mn and " sc0" in t and mn.startswith("global"):
            I.dst = R[0]; I.rd = set().union(*R[1:])
        else:
            I.rd = set().union(*R) if R else set()
            if "atomic" in mn and " sc0" in t: I.dst = R[0]
            if "store" in mn and ("x4" in mn or "x3" in mn):
                I.sdata = R[0] if mn.startswith("buffer") else R[1]
    elif mn.startswith("s_"):
        I.kind = "salu"
        if mn.startswith(("s_cmp", "s_cbranch", "s_branch", "s_waitcnt", "s_barrier", "s_endpgm", "s_setprio", "s_sleep", "s_bitcmp")):
            I.rd = set().union(*R) if R else set()
        else:
            I.wr = R[0] if R else set(); I.rd = set().union(*R[1:]) if len(R) > 1 else set()
            if "saveexec" in mn: I.wr |= regs_of("exec")
    else:
        raise ValueError("unknown instr " + line)
    return I

VALUK = ("valu", "trans", "permlane", "readlane")
def need(P, C):
    n = 0
    pv = {r for r in P.wr if r[0] in "va"}
    ps = {r for r in P.wr if r[0] == "s"}
    if P.kind in VALUK:
        if pv:
            if C.kind in VALUK and C.dpp and pv & C.rd: n = max(n, 2)
            if C.kind == "permlane" and pv & C.rd: n = max(n, 2)
            if C.kind == "readlane" and pv & C.rd: n = max(n, 1)
            if P.kind == "trans" and C.kind in VALUK + ("vmem", "ds") and pv & C.rd: n = max(n, 1)
            if C.kind == "mfma" and pv & (C.rd | C.srcc): n = max(n, 2)
        if ps:
            if C.kind in VALUK + ("mfma",) and ps & C.rd: n = max(n, 4 if C.kind == "readlane" else 2)
            if C.kind == "vmem" and ps & C.rd: n = max(n, 5)
            if C.kind == "salu" and ps & C.rd: n = max(n, 1)
            if C.mn.startswith("s_cbranch_vcc") and ("s", 106) in ps: n = max(n, 5)
            if ("s", 126) in ps and C.kind in VALUK + ("mfma",): n = max(n, 5)
    if P.kind == "mfma":
        D = P.wr
        if C.kind == "mfma":
            if D & C.rd: n = max(n, 8)
            if D & C.srcc and D != C.srcc: n = max(n, 6)
            if D & C.wr and D != C.srcc: n = max(n, 8)
        elif C.kind in VALUK:
            if D & (C.rd | C.wr): n = max(n, 8)
            if P.srcc & C.wr: n = max(n, 3)
        elif C.kind in ("ds", "vmem"):
            if D & (C.rd | C.dst): n = max(n, 8)
    if P.kind == "salu" and ("s", 124) in P.wr and C.kind == "vmem" and C.lds: n = max(n, 1)
    if P.kind == "vmem" and P.sdata:
        if C.kind in VALUK + ("mfma",) and P.sdata & C.wr: n = max(n, 2)
        if C.kind in ("ds", "vmem") and P.sdata & C.dst: n = max(n, 1)
    return n

def maxneed(P):
    if P.kind == "mfma": return 8
    if P.kind in VALUK:
        if any(r[0] == "s" for r in P.wr): return 5
        return 2
    if P.kind == "salu" and ("s", 124) in P.wr: return 1
    if P.kind == "vmem" and P.sdata: return 2
    return 0

class Asm:
    def __init__(self):
        self.out = []; self.hist = []; self.nlab = 0
    def raw(self, s): self.out.append(s)
    def _nop(self, n):
        while n > 0:
            k = min(n, 16)
            self.out.append(f"  s_nop {k-1}")
            I = parse(f"s_nop {k-1}"); self.hist.append(I); n -= k
    def __call__(self, text):
        for line in text.split("\n"):
            line = line.split(";")[0].strip()
            if not line: continue
            if line.endswith(":") or line.startswith("."):
                self.out.append(line); continue
            C = parse(line)
            isbr = C.mn.startswith(("s_cbranch", "s_branch"))
            d = 0; pad = 0
            for P in reversed(self.hist[-12:]):
                r = need(P, C) - d
                if isbr: r = max(r, maxneed(P) - d - 1)
                pad = max(pad, r)
                d += P.ws
                if d >= 10: break
            if pad > 0: self._nop(pad)
            self.out.append("  " + line)
            self.hist.append(C)
    def label(self, base="L"):
        self.nlab += 1
        return f"{base}_{self.nlab}"
    def text(self): return "\n".join(self.out) + "\n"
```

```python
import sys, math
from asmlib import Asm, f32
KN = "adaLN_cond__gqa_block_cached__geglu_ffn__decode"

EPOCH = 0
MODP = 0x1000
QP = 0x10000
STAT = 0x20000
WOP = 0x24000
YP = 0x30000
PART = 0x80000
DBGT = 0x400000
LDS_O = 0x0000; LDS_ST = 0x4000; LDS_Q = 0x4100; LDS_CNT = 0x4500; LDS_RED = 0x4600
LDS_V = 0x5A00; LDS_LN = 0x8A00; LDS_H = 0x8B00; LDS_W = 0x9000; LDS_TOTAL = 0x21000
VX, VGA, VCB, VSB, VGB, VX1 = [LDS_V + 2048 * i for i in range(6)]
W_MOD0, W_Q0, W_WO0, W_FFN0, W_NONE0 = 0, 48, 112, 176, 232
OOB = 0x8000000
SPIN = 200000

def gen(stamps=False):
    a = Asm()
    hdr = open('cdna_kernels/' + KN + '.s.ref').read().split('; Override launch')[0]
    a.raw(hdr.rstrip())
    a.raw(f"; @launch grid=(256,1,1) block=(512,1,1) lds={LDS_TOTAL}")
    a.raw('.amdgcn_target "amdgcn-amd-amdhsa--gfx950"\n.text')
    a.raw(f".globl {KN}_kernel\n.p2align 8\n.type {KN}_kernel,@function\n{KN}_kernel:")

    nst = [0]
    def stamp(i, only_wave=None):
        if not stamps: return
        a(f"""s_memrealtime s[90:91]
              s_lshl_b32 s92, s2, 3
              s_add_u32 s92, s92, s3
              s_lshl_b32 s92, s92, 6
              s_add_u32 s92, s92, {DBGT + 4*i}
              s_waitcnt lgkmcnt(0)
              v_mov_b32 v126, s90
              v_mov_b32 v127, 0
              s_mov_b64 s[94:95], exec
              s_mov_b64 exec, 1
              buffer_store_dword v126, v127, s[40:43], s92 offen
              s_mov_b64 exec, s[94:95]""")

    def rb(dst, src):
        a(f"v_cvt_pk_bf16_f32 v{dst}, v{src}, v{src}\nv_lshlrev_b32 v{dst}, 16, v{dst}")
    def rb_n(regs):
        for r in regs: a(f"v_cvt_pk_bf16_f32 v{r}, v{r}, v{r}")
        for r in regs: a(f"v_lshlrev_b32 v{r}, 16, v{r}")
    def unpack(dst, src):
        a(f"v_lshlrev_b32 v{dst}, 16, v{src}\nv_and_b32 v{dst+1}, 0xffff0000, v{src}")
    def rowred(op, regs, steps=(8, 4, 2, 1)):
        for s in steps:
            for r in regs:
                a(f"v_{op}_f32_dpp v{r}, v{r}, v{r} row_ror:{s} row_mask:0xf bank_mask:0xf")
    def xrowred(op, regs, tmps):
        for sw in ("16", "32"):
            for r, t in zip(regs, tmps): a(f"v_mov_b32 v{t}, v{r}")
            for r, t in zip(regs, tmps): a(f"v_permlane{sw}_swap_b32 v{r}, v{t}")
            for r, t in zip(regs, tmps): a(f"v_{op}_f32 v{r}, v{r}, v{t}")
    def transpose(src, dst):
        for i in range(8):
            d, hl = i >> 1, i & 1
            for m in range(4):
                a(f"v_perm_b32 v{dst+4*i+m}, v{src+4*(2*m+1)+d}, v{src+4*(2*m)+d}, s{49+hl}")
    def mfma8(acc, xa, wb):
        for i in range(8):
            a(f"v_mfma_f32_16x16x32_bf16 v[{acc+4*i}:{acc+4*i+3}], v[{xa}:{xa+3}], v[{wb+4*i}:{wb+4*i+3}], 0")
    def fdiv(q, n, d, t0, t1):
        a(f"""v_rcp_f32 v{t0}, v{d}
              v_mul_f32 v{q}, v{n}, v{t0}
              v_fma_f32 v{t1}, -v{q}, v{d}, v{n}
              v_fma_f32 v{q}, v{t1}, v{t0}, v{q}""")
    def spin_tail(top, cnt='s61'):
        a(f"""s_sub_u32 {cnt}, {cnt}, 1
              s_cmp_lg_u32 {cnt}, 0
              s_cbranch_scc1 {top}""")

    a(f"""
    s_cmp_ge_u32 s2, 256
    s_cbranch_scc1 L_end
    s_load_dwordx16 s[4:19], s[0:1], 0
    s_load_dwordx8 s[20:27], s[0:1], 64
    s_load_dwordx4 s[28:31], s[0:1], 96
    v_lshrrev_b32 v9, 6, v0
    v_and_b32 v1, 63, v0
    v_readfirstlane_b32 s3, v9
    v_lshlrev_b32 v3, 4, v1
    v_lshrrev_b32 v4, 4, v1
    v_and_b32 v5, 15, v1
    v_and_b32 v2, 3, v1
    v_lshlrev_b32 v2, 10, v2
    v_bfe_u32 v9, v1, 2, 2
    v_lshl_add_u32 v2, v9, 8, v2
    v_lshl_add_u32 v2, v4, 4, v2
    s_mov_b32 s49, 0x05040100
    s_mov_b32 s50, 0x07060302
    s_mov_b32 s51, {f32(128 ** -0.5)}
    s_mov_b32 s52, {f32(math.log2(math.e))}
    s_lshl_b32 s53, s2, 19
    s_lshr_b32 s58, s2, 5
    s_and_b32 s59, s2, 31
    s_lshl_b32 s54, s3, 13
    s_add_u32 s54, s54, s53
    s_add_u32 s55, s54, 4096
    s_add_u32 s56, s54, 0x10000
    s_add_u32 s57, s54, 0x11000
    s_mov_b32 s34, 0x8000000
    s_mov_b32 s35, 0x20000
    s_mov_b32 s38, 0x8000000
    s_mov_b32 s39, 0x20000
    s_mov_b32 s42, 0x20000000
    s_mov_b32 s43, 0x20000
    s_mov_b32 s47, 0x20000
    s_waitcnt lgkmcnt(0)
    s_load_dword s48, s[30:31], {EPOCH}
    s_mov_b32 s32, s6
    s_mov_b32 s33, s7
    s_mov_b32 s36, s8
    s_mov_b32 s37, s9
    s_mov_b32 s40, s30
    s_mov_b32 s41, s31
    """)
    stamp(0)
    a(f"""
    s_cmp_lt_u32 s2, {W_WO0}
    s_cbranch_scc1 L_job
    s_cmp_eq_u32 s3, 0
    s_cbranch_scc1 L_helper
    """)
    a("L_pf:")
    a(f"""
    s_cmp_lt_u32 s2, {W_WO0}
    s_cbranch_scc1 L_kv
    s_cmp_ge_u32 s2, {W_NONE0}
    s_cbranch_scc1 L_kv
    s_lshl_b32 s62, s3, 13
    s_add_u32 s62, s62, {LDS_W}
    s_cmp_ge_u32 s2, {W_FFN0}
    s_cbranch_scc1 L_dma_ffn
    """)
    a(f"""
    s_mov_b32 s44, s12
    s_mov_b32 s45, s13
    s_mov_b32 s46, {4096*1024}
    s_sub_u32 s60, s2, {W_WO0}
    s_lshr_b32 s63, s60, 2
    s_lshl_b32 s63, s63, 18
    s_lshl_b32 s64, s3, 15
    s_add_u32 s63, s63, s64
    s_and_b32 s64, s60, 3
    s_lshl_b32 s64, s64, 8
    s_add_u32 s63, s63, s64
    v_lshlrev_b32 v9, 10, v4
    v_lshl_add_u32 v9, v5, 4, v9
    """)
    for j in range(8):
        a(f"""s_add_u32 m0, s62, {1024*j}
              s_add_u32 s64, s63, {(8*(j&3) + 4*(j>>2)) * 1024}
              buffer_load_dwordx4 v9, s[44:47], s64 offen nt lds""")
    a("s_branch L_kv")
    a("L_dma_ffn:")
    a(f"""
    s_sub_u32 s60, s2, {W_FFN0}
    s_mov_b32 s46, {512*3584}
    s_mul_i32 s63, s3, {64*3584}
    s_lshl_b32 s64, s60, 6
    s_add_u32 s63, s63, s64
    v_and_b32 v9, 1, v1
    v_lshlrev_b32 v9, 3, v9
    v_add_u32 v9, v9, v4
    v_mul_u32_u24 v9, {4*3584}, v9
    v_bfe_u32 v10, v1, 1, 2
    v_lshl_add_u32 v9, v10, 4, v9
    """)
    for mat in range(2):
        a(f"""s_mov_b32 s44, s{16+2*mat}
              s_mov_b32 s45, s{17+2*mat}
              s_mov_b32 exec_lo, {'0x00ff00ff' if mat == 0 else '0xff00ff00'}
              s_mov_b32 exec_hi, {'0x00ff00ff' if mat == 0 else '0xff00ff00'}""")
        for j in range(8):
            a(f"""s_add_u32 m0, s62, {1024*j}
                  s_add_u32 s64, s63, {(16*(j>>2) + (j&3)) * 3584}
                  buffer_load_dwordx4 v9, s[44:47], s64 offen nt lds""")
    a(f"""
    s_mov_b64 exec, -1
    s_mov_b32 s44, s20
    s_mov_b32 s45, s21
    s_mov_b32 s46, {1792*1024}
    s_lshl_b32 s62, s3, 12
    s_add_u32 s62, s62, {LDS_W + 65536}
    s_lshl_b32 s63, s60, 15
    s_and_b32 s64, s3, 1
    s_lshl_b32 s64, s64, 12
    s_add_u32 s63, s63, s64
    s_lshr_b32 s64, s3, 1
    s_lshl_b32 s64, s64, 8
    s_add_u32 s63, s63, s64
    v_lshlrev_b32 v9, 13, v4
    v_lshl_add_u32 v9, v5, 4, v9
    s_mov_b32 m0, s62
    """)
    for j in range(4):
        a(f"buffer_load_dwordx4 v9, s[44:47], s63 offen offset:{1024*j} nt lds")

    def issueK(base, so):
        for t in range(2):
            for j in range(4):
                r = base + 16*t + 4*j
                a(f"buffer_load_dwordx4 v[{r}:{r+3}], v2, s[32:35], s{so+t} offen offset:{64*j} nt")
    def issueV(base, so):
        for t in range(2):
            for j in range(4):
                r = base + 16*t + 4*j
                a(f"buffer_load_dwordx4 v[{r}:{r+3}], v3, s[36:39], s{so+t} offen offset:{1024*j} nt")
    a("L_kv:")
    issueK(128, 54); issueV(160, 54); issueK(192, 56); issueV(224, 56)
    a("""
    s_cmp_eq_u32 s3, 0
    s_cbranch_scc1 L_start
    s_barrier
    L_start:
    """)
    stamp(1)
    a(f"""
    v_and_b32 v9, 3, v1
    v_lshlrev_b32 v9, 8, v9
    v_lshl_add_u32 v9, v4, 4, v9
    """)
    for j in range(4):
        a(f"ds_read_b128 v[{16+4*j}:{19+4*j}], v9 offset:{LDS_Q + 64*j}")
    for r in range(32, 64): a(f"v_mov_b32 v{r}, 0")
    a(f"""
    v_mov_b32 v6, {f32(-3.0e38)}
    v_mov_b32 v7, 0
    v_mov_b32 v14, {LDS_CNT}
    v_mov_b32 v15, 1
    s_waitcnt lgkmcnt(0)
    """)
    def half(kb, vb, so):
        a(f"""
        s_cmp_ge_u32 s{so}, {OOB}
        s_cbranch_scc1 L_done
        s_mov_b64 exec, 1
        ds_add_rtn_u32 v13, v14, v15
        s_mov_b64 exec, -1
        s_waitcnt vmcnt(24)
        """)
        for j in range(4):
            for t in range(2):
                c = "0" if j == 0 else f"v[{64+4*t}:{67+4*t}]"
                r = kb + 16*t + 4*j
                a(f"v_mfma_f32_16x16x32_bf16 v[{64+4*t}:{67+4*t}], v[{r}:{r+3}], v[{16+4*j}:{19+4*j}], {c}")
        a(f"""
        s_waitcnt lgkmcnt(0)
        v_readfirstlane_b32 s62, v13
        s_lshl_b32 s63, s62, 13
        s_add_u32 s63, s63, s53
        s_cmp_lt_u32 s62, 64
        s_cselect_b32 s{so}, s63, {OOB}
        s_add_u32 s{so+1}, s{so}, 4096
        """)
        issueK(kb, so)
        for i in range(4): a(f"v_cvt_pk_bf16_f32 v{92+i}, v{64+2*i}, v{65+2*i}")
        for i in range(4): unpack(64 + 2*i, 92 + i)
        for i in range(8): a(f"v_mul_f32 v{64+i}, s51, v{64+i}")
        for i in range(4): a(f"v_cvt_pk_bf16_f32 v{92+i}, v{64+2*i}, v{65+2*i}")
        for i in range(4): unpack(64 + 2*i, 92 + i)
        a("""
        v_max3_f32 v9, v64, v65, v66
        v_max3_f32 v10, v67, v68, v69
        v_max3_f32 v9, v9, v70, v71
        v_max3_f32 v9, v9, v10, v6
        """)
        xrowred("max", [9], [10])
        a("v_sub_f32 v8, v6, v9")
        for i in range(8): a(f"v_sub_f32 v{64+i}, v{64+i}, v9")
        a("v_mul_f32 v8, s52, v8")
        for i in range(8): a(f"v_mul_f32 v{64+i}, s52, v{64+i}")
        a("v_exp_f32 v8, v8")
        for i in range(8): a(f"v_exp_f32 v{64+i}, v{64+i}")
        a("v_mov_b32 v6, v9")
        for i in range(4): a(f"v_cvt_pk_bf16_f32 v{72+i}, v{64+2*i}, v{65+2*i}")
        a("""
        v_add_f32 v92, v64, v65
        v_add_f32 v93, v66, v67
        v_add_f32 v94, v68, v69
        v_add_f32 v95, v70, v71
        v_add_f32 v92, v92, v93
        v_add_f32 v94, v94, v95
        v_add_f32 v92, v92, v94
        v_fma_f32 v7, v7, v8, v92
        """)
        for r in range(32, 64): a(f"v_mul_f32 v{r}, v8, v{r}")
        a("s_waitcnt vmcnt(24)")
        def perms(i):
            d, hl = i >> 1, i & 1
            t = 76 + 4*(i & 3)
            for m in range(4):
                a(f"v_perm_b32 v{t+m}, v{vb+4*(2*m+1)+d}, v{vb+4*(2*m)+d}, s{49+hl}")
        perms(0)
        for i in range(8):
            if i < 7: perms(i + 1)
            t = 76 + 4*(i & 3)
            if i == 7: issueV(vb, so)
            a(f"v_mfma_f32_16x16x32_bf16 v[{32+4*i}:{35+4*i}], v[{t}:{t+3}], v[72:75], v[{32+4*i}:{35+4*i}]")
    a("L_loop:")
    half(128, 160, 54)
    half(192, 224, 56)
    a("s_branch L_loop")
    a("L_done:")
    stamp(2)
    xrowred("add", [7], [10])
    a(f"""
    s_lshl_b32 s62, s3, 11
    v_lshlrev_b32 v9, 9, v5
    v_lshl_add_u32 v9, v4, 7, v9
    v_add_u32 v9, s62, v9
    s_lshl_b32 s62, s3, 3
    v_lshlrev_b32 v10, 6, v5
    v_add_u32 v10, s62, v10
    s_mov_b32 exec_lo, 0x000f000f
    s_mov_b32 exec_hi, 0x000f000f
    """)
    for i in range(8):
        a(f"ds_write_b128 v9, v[{32+4*i}:{35+4*i}] offset:{LDS_O + 16*i}")
    a(f"""
    ds_write_b64 v10, v[6:7] offset:{LDS_ST}
    s_mov_b64 exec, -1
    s_waitcnt vmcnt(0) lgkmcnt(0)
    s_barrier
    s_cmp_ge_u32 s3, 2
    s_cbranch_scc1 L_tail
    v_lshlrev_b32 v9, 4, v0
    v_lshrrev_b32 v10, 5, v0
    v_lshlrev_b32 v11, 6, v10
    """)
    for i in range(4): a(f"ds_read_b128 v[{64+4*i}:{67+4*i}], v11 offset:{LDS_ST + 16*i}")
    for k in range(8): a(f"ds_read_b128 v[{32+4*k}:{35+4*k}], v9 offset:{LDS_O + 2048*k}")
    a(f"""
    s_lshl_b32 s62, s58, 10
    s_and_b32 s63, s59, 15
    s_lshl_b32 s63, s63, 4
    s_add_u32 s62, s62, s63
    s_lshr_b32 s63, s59, 4
    s_lshl_b32 s63, s63, 3
    s_add_u32 s62, s62, s63
    s_add_u32 s62, s62, {STAT}
    s_lshl_b32 s63, s2, 11
    s_add_u32 s63, s63, {PART}
    v_lshlrev_b32 v10, 8, v10
    s_waitcnt lgkmcnt(8)
    v_max3_f32 v12, v64, v66, v68
    v_max3_f32 v13, v70, v72, v74
    v_max3_f32 v12, v12, v76, v78
    v_max_f32 v12, v12, v13
    """)
    for k in range(8): a(f"v_sub_f32 v{64+2*k}, v{64+2*k}, v12")
    for k in range(8): a(f"v_mul_f32 v{64+2*k}, s52, v{64+2*k}")
    for k in range(8): a(f"v_exp_f32 v{64+2*k}, v{64+2*k}")
    a("v_mul_f32 v13, v64, v65")
    for k in range(1, 8): a(f"v_fma_f32 v13, v{64+2*k}, v{65+2*k}, v13")
    a("s_waitcnt lgkmcnt(0)")
    for x in range(4): a(f"v_mul_f32 v{92+x}, v64, v{32+x}")
    for k in range(1, 8):
        for x in range(4): a(f"v_fma_f32 v{92+x}, v{64+2*k}, v{32+4*k+x}, v{92+x}")
    for x in range(4): a(f"v_min_u32 v{92+x}, -2, v{92+x}")
    a(f"""
    v_min_u32 v12, -2, v12
    v_min_u32 v13, -2, v13
    buffer_store_dwordx4 v[92:95], v9, s[40:43], s63 offen sc1
    s_mov_b32 exec_lo, 1
    s_mov_b32 exec_hi, 1
    buffer_store_dwordx2 v[12:13], v10, s[40:43], s62 offen sc1
    s_mov_b64 exec, -1
    """)
    stamp(3)
    a("L_tail:")
    a(f"""
    s_cmp_lt_u32 s2, {W_WO0}
    s_cbranch_scc1 L_end
    s_cmp_ge_u32 s2, {W_NONE0}
    s_cbranch_scc1 L_end
    s_lshl_b32 s62, s3, 13
    s_add_u32 s62, s62, {LDS_W}
    v_add_u32 v9, s62, v3
    """)
    for j in range(8): a(f"ds_read_b128 v[{128+4*j}:{131+4*j}], v9 offset:{1024*j}")
    a(f"""
    v_mov_b32 v10, 0
    s_mov_b32 s61, {SPIN}
    L_rst:
    global_load_dword v11, v10, s[28:29] sc1
    s_waitcnt vmcnt(0)
    v_readfirstlane_b32 s62, v11
    s_cmp_eq_u32 s62, 256
    s_cbranch_scc1 L_rst_ok
    """)
    spin_tail("L_rst")
    a(f"""
    L_rst_ok:
    s_waitcnt lgkmcnt(0)
    """)
    transpose(128, 160)
    a(f"""
    s_cmp_ge_u32 s2, {W_FFN0}
    s_cbranch_scc1 L_ffn
    """)
    a(f"""
    s_sub_u32 s60, s2, {W_WO0}
    s_lshr_b32 s62, s60, 2
    s_lshl_b32 s63, s62, 1
    s_lshr_b32 s64, s3, 2
    s_add_u32 s63, s63, s64
    s_lshl_b32 s65, s63, 8
    s_add_u32 s65, s65, {STAT}
    s_lshr_b32 s64, s63, 2
    s_lshl_b32 s64, s64, 16
    s_and_b32 s63, s63, 3
    s_lshl_b32 s63, s63, 9
    s_add_u32 s64, s64, s63
    s_and_b32 s63, s3, 3
    s_lshl_b32 s63, s63, 7
    s_add_u32 s64, s64, s63
    s_add_u32 s64, s64, {PART}
    s_add_u32 s66, s64, {16*2048}
    v_lshlrev_b32 v9, 11, v5
    v_lshl_add_u32 v9, v4, 4, v9
    v_lshlrev_b32 v10, 4, v5
    s_mov_b32 s61, {SPIN}
    L_wo_poll:
    buffer_load_dwordx4 v[64:67], v10, s[40:43], s65 offen sc1
    buffer_load_dwordx4 v[96:99], v9, s[40:43], s64 offen sc1
    buffer_load_dwordx4 v[100:103], v9, s[40:43], s64 offen offset:64 sc1
    buffer_load_dwordx4 v[104:107], v9, s[40:43], s66 offen sc1
    buffer_load_dwordx4 v[108:111], v9, s[40:43], s66 offen offset:64 sc1
    s_waitcnt vmcnt(0)
    v_max3_u32 v11, v64, v65, v66
    v_max3_u32 v12, v67, v96, v97
    v_max3_u32 v11, v11, v98, v99
    v_max3_u32 v12, v12, v100, v101
    v_max3_u32 v11, v11, v102, v103
    v_max3_u32 v12, v12, v104, v105
    v_max3_u32 v11, v11, v106, v107
    v_max3_u32 v12, v12, v108, v109
    v_max3_u32 v11, v11, v110, v111
    v_max_u32 v11, v11, v12
    v_cmp_eq_u32 vcc, -1, v11
    s_cmp_eq_u64 vcc, 0
    s_cbranch_scc1 L_wo_go
    """)
    spin_tail("L_wo_poll")
    a("L_wo_go:")
    stamp(4)
    a("v_max_f32 v11, v64, v66")
    rowred("max", [11])
    a("""
    v_sub_f32 v64, v64, v11
    v_sub_f32 v66, v66, v11
    v_mul_f32 v64, s52, v64
    v_mul_f32 v66, s52, v66
    v_exp_f32 v64, v64
    v_exp_f32 v66, v66
    v_mul_f32 v112, v64, v65
    v_fma_f32 v112, v66, v67, v112
    """)
    for e in range(8): a(f"v_mul_f32 v{96+e}, v64, v{96+e}")
    for e in range(8): a(f"v_fma_f32 v{96+e}, v66, v{104+e}, v{96+e}")
    rowred("add", [112] + list(range(96, 104)))
    a("v_rcp_f32 v113, v112")
    for e in range(8): a(f"v_mul_f32 v{104+e}, v{96+e}, v113")
    for e in range(8): a(f"v_fma_f32 v{96+e}, -v{104+e}, v112, v{96+e}")
    for e in range(8): a(f"v_fma_f32 v{104+e}, v{96+e}, v113, v{104+e}")
    for m in range(4): a(f"v_cvt_pk_bf16_f32 v{72+m}, v{104+2*m}, v{105+2*m}")
    mfma8(32, 72, 160)
    def red_write():
        a(f"""
        s_lshl_b32 s63, s3, 9
        s_add_u32 s63, s63, {LDS_RED}
        v_lshlrev_b32 v9, 5, v1
        v_add_u32 v9, s63, v9
        s_mov_b64 exec, 0xffff
        """)
        for i in range(0, 8, 2):
            a(f"ds_write2_b32 v9, v{32+4*i}, v{36+4*i} offset0:{i} offset1:{i+1}")
        a("""
        s_mov_b64 exec, -1
        s_waitcnt lgkmcnt(0)
        s_barrier
        """)
    red_write()
    a(f"""
    s_cmp_lg_u32 s3, 0
    s_cbranch_scc1 L_end
    s_mov_b32 exec_hi, 0
    """)
    for k in range(8): a(f"ds_read_b128 v[{32+4*k}:{35+4*k}], v3 offset:{LDS_RED + 512*k}")
    a(f"""
    s_lshl_b32 s63, s60, 9
    s_add_u32 s63, s63, {WOP}
    s_waitcnt lgkmcnt(0)
    """)
    for st in (16, 8, 4):
        for b in range(32, 32 + st):
            a(f"v_add_f32 v{b}, v{b}, v{b+st}")
    for x in range(4): a(f"v_min_u32 v{32+x}, -2, v{32+x}")
    a("buffer_store_dwordx4 v[32:35], v3, s[40:43], s63 offen sc1")
    stamp(5)
    a("s_endpgm")

    a("L_ffn:")
    a(f"""
    s_sub_u32 s60, s2, {W_FFN0}
    s_cmp_ge_u32 s3, 4
    s_cbranch_scc1 L_ffn_nd
    s_lshl_b32 s62, s3, 13
    s_add_u32 s62, s62, {LDS_W + 65536}
    v_add_u32 v9, s62, v3
    """)
    for j in range(8): a(f"ds_read_b128 v[{128+4*j}:{131+4*j}], v9 offset:{1024*j}")
    a("s_waitcnt lgkmcnt(0)")
    transpose(128, 192)
    a("L_ffn_nd:")
    a(f"""
    s_mul_i32 s48, s48, 1664525
    s_add_u32 s48, s48, 1013904223
    v_lshlrev_b32 v9, 3, v0
    v_lshlrev_b32 v10, 1, v0
    global_load_ushort v112, v10, s[4:5]
    s_mov_b32 s61, {SPIN}
    L_mod_poll:
    """)
    for vv in range(4):
        for ks in range(2):
            a(f"""s_mov_b32 s62, {MODP + (ks*3072 + 1024 + 512*vv) * 8}
                  buffer_load_dwordx2 v[{96+4*vv+2*ks}:{97+4*vv+2*ks}], v9, s[40:43], s62 offen sc1""")
    a("s_waitcnt vmcnt(0)\nv_xor_b32 v11, s48, v97")
    for r in range(99, 112, 2): a(f"v_bitop3_b32 v11, v11, v{r}, s48 bitop3:0xf6")
    a("""
    v_cmp_ne_u32 vcc, 0, v11
    s_cmp_eq_u64 vcc, 0
    s_cbranch_scc1 L_mod_ok
    """)
    spin_tail("L_mod_poll")
    a("L_mod_ok:")
    for vv in range(4): a(f"v_add_f32 v{96+4*vv}, v{96+4*vv}, v{98+4*vv}")
    rb_n([96, 100, 104, 108])
    a("v_add_f32 v104, 1.0, v104\nv_lshlrev_b32 v112, 16, v112\nv_lshlrev_b32 v9, 2, v0")
    rb_n([104])
    a(f"""
    ds_write_b32 v9, v112 offset:{VX}
    ds_write_b32 v9, v96 offset:{VGA}
    ds_write_b32 v9, v100 offset:{VSB}
    ds_write_b32 v9, v104 offset:{VCB}
    ds_write_b32 v9, v108 offset:{VGB}
    """)
    a(f"""
    s_lshl_b32 s62, s3, 8
    v_and_b32 v10, 1, v1
    v_lshlrev_b32 v10, 7, v10
    v_lshl_add_u32 v10, v4, 4, v10
    v_add_u32 v10, s62, v10
    v_lshrrev_b32 v9, 1, v5
    v_lshl_add_u32 v9, v9, 11, v10
    s_waitcnt lgkmcnt(0)
    """)
    for ai, arr in enumerate((VX, VGA, VCB, VSB)):
        for hf in range(2):
            r = 224 + 8*ai + 4*hf
            a(f"ds_read_b128 v[{r}:{r+3}], v10 offset:{arr + 64*hf}")
    a(f"""
    s_mov_b32 s64, {WOP}
    s_mov_b32 s66, {WOP + 8*2048}
    s_mov_b32 s61, {SPIN}
    L_f_poll:
    buffer_load_dwordx4 v[96:99], v9, s[40:43], s64 offen sc1
    buffer_load_dwordx4 v[100:103], v9, s[40:43], s64 offen offset:64 sc1
    buffer_load_dwordx4 v[104:107], v9, s[40:43], s66 offen sc1
    buffer_load_dwordx4 v[108:111], v9, s[40:43], s66 offen offset:64 sc1
    s_waitcnt vmcnt(0)
    v_max3_u32 v11, v96, v97, v98
    v_max3_u32 v12, v99, v100, v101
    v_max3_u32 v11, v11, v102, v103
    v_max3_u32 v12, v12, v104, v105
    v_max3_u32 v11, v11, v106, v107
    v_max3_u32 v12, v12, v108, v109
    v_max3_u32 v11, v11, v110, v111
    v_max_u32 v11, v11, v12
    v_cmp_eq_u32 vcc, -1, v11
    s_cmp_eq_u64 vcc, 0
    s_cbranch_scc1 L_f_go
    """)
    spin_tail("L_f_poll")
    a("L_f_go:")
    stamp(4)
    E = list(range(96, 104))
    for e in range(8): a(f"v_add_f32 v{96+e}, v{96+e}, v{104+e}")
    rowred("add", E, steps=(8, 4, 2))
    rb_n(E)
    a("s_waitcnt lgkmcnt(0)")
    for e in range(8): a(f"v_mul_f32 v{96+e}, v{232+e}, v{96+e}")
    rb_n(E)
    for e in range(8): a(f"v_add_f32 v{96+e}, v{224+e}, v{96+e}")
    rb_n(E)
    a(f"""
    ds_write_b128 v10, v[96:99] offset:{VX1}
    ds_write_b128 v10, v[100:103] offset:{VX1 + 64}
    v_add_f32 v104, v96, v97
    v_add_f32 v105, v98, v99
    v_add_f32 v106, v100, v101
    v_add_f32 v107, v102, v103
    v_add_f32 v104, v104, v105
    v_add_f32 v106, v106, v107
    v_add_f32 v112, v104, v106
    """)
    rowred("add", [112], steps=(1,))
    a(f"v_mul_f32 v114, {f32(1/16)}, v112")
    for e in range(8): a(f"v_sub_f32 v{104+e}, v{96+e}, v114")
    a("v_mul_f32 v113, v104, v104")
    for e in range(1, 8): a(f"v_fma_f32 v113, v{104+e}, v{104+e}, v113")
    rowred("add", [113], steps=(1,))
    a(f"""
    s_lshl_b32 s62, s3, 5
    v_lshlrev_b32 v11, 3, v4
    v_add_u32 v11, s62, v11
    ds_write_b64 v11, v[112:113] offset:{LDS_LN}
    v_lshlrev_b32 v11, 4, v5
    s_waitcnt lgkmcnt(0)
    s_barrier
    ds_read_b128 v[112:115], v11 offset:{LDS_LN}
    s_waitcnt lgkmcnt(0)
    v_add_f32 v116, v112, v114
    """)
    rowred("add", [116])
    a(f"""
    v_mul_f32 v116, {f32(1/512)}, v116
    v_mul_f32 v112, {f32(1/16)}, v112
    v_mul_f32 v114, {f32(1/16)}, v114
    v_sub_f32 v112, v112, v116
    v_sub_f32 v114, v114, v116
    v_mul_f32 v112, v112, v112
    v_fma_f32 v112, v114, v114, v112
    v_add_f32 v113, v113, v115
    v_mov_b32 v114, {f32(16.0)}
    v_fma_f32 v113, v112, v114, v113
    """)
    rowred("add", [113])
    a(f"v_mul_f32 v113, {f32(1/512)}, v113")
    rb_n([116, 113])
    a(f"v_add_f32 v113, {f32(1e-5)}, v113")
    rb_n([113])
    a("v_sqrt_f32 v113, v113")
    for e in range(8): a(f"v_sub_f32 v{96+e}, v{96+e}, v116")
    rb_n([113] + E)
    a("v_rcp_f32 v114, v113")
    for e in range(8): a(f"v_mul_f32 v{104+e}, v{96+e}, v114")
    for e in range(8): a(f"v_fma_f32 v{96+e}, -v{104+e}, v113, v{96+e}")
    for e in range(8): a(f"v_fma_f32 v{96+e}, v{96+e}, v114, v{104+e}")
    rb_n(E)
    for e in range(8): a(f"v_mul_f32 v{96+e}, v{96+e}, v{240+e}")
    rb_n(E)
    for e in range(8): a(f"v_add_f32 v{96+e}, v{96+e}, v{248+e}")
    for m in range(4): a(f"v_cvt_pk_bf16_f32 v{72+m}, v{96+2*m}, v{97+2*m}")
    mfma8(32, 72, 160)
    a(f"""
    v_lshrrev_b32 v9, 1, v1
    v_mul_u32_u24 v9, 640, v9
    v_and_b32 v11, 1, v1
    v_lshl_add_u32 v9, v11, 2, v9
    s_lshl_b32 s62, s3, 3
    v_add_u32 v9, s62, v9
    v_cmp_eq_u32 vcc, 1, v11
    """)
    for i in range(8): a(f"v_cndmask_b32 v{96+i}, v{32+4*i}, v{33+4*i}, vcc")
    a("s_mov_b64 exec, 0xffff")
    for i in range(8): a(f"ds_write_b32 v9, v{96+i} offset:{LDS_RED + 80*i}")
    a(f"""
    s_mov_b64 exec, -1
    s_waitcnt lgkmcnt(0)
    s_barrier
    s_cmp_ge_u32 s3, 4
    s_cbranch_scc1 L_final
    v_mul_u32_u24 v9, 80, v1
    """)
    for i in range(4): a(f"ds_read_b128 v[{96+4*i}:{99+4*i}], v9 offset:{LDS_RED + 16*i}")
    a(f"""
    s_lshl_b32 s62, s3, 7
    s_add_u32 s62, s62, {LDS_H}
    v_lshlrev_b32 v10, 1, v1
    v_add_u32 v10, s62, v10
    v_lshlrev_b32 v11, 4, v4
    v_add_u32 v11, s62, v11
    s_lshl_b32 s63, s60, 11
    s_lshl_b32 s62, s3, 9
    s_add_u32 s63, s63, s62
    s_add_u32 s63, s63, {YP}
    v_lshlrev_b32 v12, 5, v1
    s_waitcnt lgkmcnt(0)
    """)
    for st in (8, 4, 2, 1):
        for b in range(96, 96 + st): a(f"v_add_f32 v{b}, v{b}, v{b+st}")
    rb_n([96])
    k0 = math.sqrt(2 / math.pi)
    a(f"""
    v_mov_b32 v98, v96
    v_mul_f32 v99, v96, v96
    v_mov_b32 v100, {f32(0.044715)}
    v_permlane32_swap_b32 v98, v97
    v_fma_f32 v99, v99, v100, 1.0
    v_mul_f32 v99, v99, v96
    v_mul_f32 v99, {f32(-2 * k0 * math.log2(math.e))}, v99
    v_exp_f32 v99, v99
    v_add_f32 v99, 1.0, v99
    v_rcp_f32 v99, v99
    v_mul_f32 v99, v96, v99
    """)
    rb_n([99])
    a(f"""
    v_mul_f32 v99, v99, v97
    v_cvt_pk_bf16_f32 v99, v99, v99
    ds_write_b16 v10, v99
    s_waitcnt lgkmcnt(0)
    ds_read_b128 v[72:75], v11
    s_waitcnt lgkmcnt(0)
    """)
    mfma8(32, 72, 192)
    for i in range(8): a(f"v_min_u32 v{96+i}, -2, v{32+4*i}")
    a("""
    s_mov_b64 exec, 0xffff
    buffer_store_dwordx4 v[96:99], v12, s[40:43], s63 offen sc1
    buffer_store_dwordx4 v[100:103], v12, s[40:43], s63 offen offset:16 sc1
    s_mov_b64 exec, -1
    """)
    stamp(5)
    a("s_endpgm")
    a("L_final:")
    a(f"""
    s_cmp_lg_u32 s3, 4
    s_cbranch_scc1 L_end
    s_cmp_ge_u32 s60, 32
    s_cbranch_scc1 L_end
    s_lshl_b32 s62, s60, 6
    v_and_b32 v10, 3, v1
    v_lshlrev_b32 v10, 4, v10
    v_add_u32 v10, s62, v10
    v_lshrrev_b32 v9, 2, v1
    v_lshl_add_u32 v9, v9, 11, v10
    ds_read_b128 v[112:115], v10 offset:{VX1}
    ds_read_b128 v[116:119], v10 offset:{VGB}
    s_add_u32 s44, s30, {YP}
    s_addc_u32 s45, s31, 0
    s_mov_b32 s46, {56*2048}
    s_mov_b32 s64, {16*2048}
    s_mov_b32 s65, {32*2048}
    s_mov_b32 s66, {48*2048}
    s_mov_b32 s61, {SPIN}
    L_y_poll:
    buffer_load_dwordx4 v[96:99], v9, s[44:47], 0 offen sc1
    buffer_load_dwordx4 v[100:103], v9, s[44:47], s64 offen sc1
    buffer_load_dwordx4 v[104:107], v9, s[44:47], s65 offen sc1
    buffer_load_dwordx4 v[108:111], v9, s[44:47], s66 offen sc1
    s_waitcnt vmcnt(0)
    v_max3_u32 v11, v96, v97, v98
    v_max3_u32 v12, v99, v100, v101
    v_max3_u32 v11, v11, v102, v103
    v_max3_u32 v12, v12, v104, v105
    v_max3_u32 v11, v11, v106, v107
    v_max3_u32 v12, v12, v108, v109
    v_max3_u32 v11, v11, v110, v111
    v_max_u32 v11, v11, v12
    v_cmp_eq_u32 vcc, -1, v11
    s_cmp_eq_u64 vcc, 0
    s_cbranch_scc1 L_y_go
    """)
    spin_tail("L_y_poll")
    a("L_y_go:")
    stamp(6)
    for st in (8, 4):
        for b in range(96, 96 + st): a(f"v_add_f32 v{b}, v{b}, v{b+st}")
    Y = [96, 97, 98, 99]
    rowred("add", Y, steps=(8, 4))
    xrowred("add", Y, [100, 101, 102, 103])
    rb_n(Y)
    a("s_waitcnt lgkmcnt(0)")
    for x in range(4): a(f"v_mul_f32 v{96+x}, v{116+x}, v{96+x}")
    rb_n(Y)
    for x in range(4): a(f"v_add_f32 v{96+x}, v{112+x}, v{96+x}")
    a(f"""
    v_cvt_pk_bf16_f32 v96, v96, v97
    v_cvt_pk_bf16_f32 v97, v98, v99
    v_lshrrev_b32 v10, 1, v10
    s_mov_b64 exec, 0xf
    global_store_dwordx2 v10, v[96:97], s[26:27]
    """)
    stamp(7)
    a(f"""
    s_cmp_lg_u32 s60, 0
    s_cbranch_scc1 L_end
    s_mov_b64 exec, 1
    v_mov_b32 v10, {EPOCH}
    v_mov_b32 v11, s48
    global_store_dword v10, v11, s[30:31] sc1
    s_endpgm
    """)

    a("L_helper:")
    a(f"""
    s_waitcnt lgkmcnt(0)
    s_mul_i32 s67, s48, 1664525
    s_add_u32 s67, s67, 1013904223
    L_helper2:
    s_setprio 3
    v_mov_b32 v92, -1
    v_mov_b32 v93, -1
    v_mov_b32 v94, -1
    v_mov_b32 v95, -1
    s_lshl_b32 s63, s2, 11
    s_add_u32 s63, s63, {PART}
    buffer_store_dwordx4 v[92:95], v3, s[40:43], s63 offen sc1
    buffer_store_dwordx4 v[92:95], v3, s[40:43], s63 offen offset:1024 sc1
    s_lshl_b32 s62, s58, 10
    s_and_b32 s63, s59, 15
    s_lshl_b32 s63, s63, 4
    s_add_u32 s62, s62, s63
    s_lshr_b32 s63, s59, 4
    s_lshl_b32 s63, s63, 3
    s_add_u32 s62, s62, s63
    s_add_u32 s62, s62, {STAT}
    v_lshlrev_b32 v10, 8, v1
    s_mov_b64 exec, 0xf
    buffer_store_dwordx2 v[92:93], v10, s[40:43], s62 offen sc1
    s_mov_b64 exec, -1
    s_cmp_lt_u32 s2, {W_WO0}
    s_cbranch_scc1 L_h_poll0
    s_cmp_ge_u32 s2, {W_NONE0}
    s_cbranch_scc1 L_h_poll0
    s_cmp_ge_u32 s2, {W_FFN0}
    s_cbranch_scc1 L_h_ffn
    s_lshl_b32 s63, s2, 9
    s_add_u32 s63, s63, {WOP - W_WO0*512}
    s_mov_b32 exec_hi, 0
    buffer_store_dwordx4 v[92:95], v3, s[40:43], s63 offen sc1
    s_mov_b64 exec, -1
    s_branch L_h_poll0
    L_h_ffn:
    s_lshl_b32 s63, s2, 11
    s_sub_u32 s63, s63, {W_FFN0*2048 - YP}
    buffer_store_dwordx4 v[92:95], v3, s[40:43], s63 offen sc1
    buffer_store_dwordx4 v[92:95], v3, s[40:43], s63 offen offset:1024 sc1
    L_h_poll0:
    v_mov_b32 v9, {LDS_CNT}
    v_mov_b32 v10, 16
    ds_write_b32 v9, v10
    s_lshl_b32 s62, s58, 12
    s_add_u32 s62, s62, {QP}
    s_add_u32 s63, s62, {4096*8}
    s_mov_b32 s61, {SPIN}
    L_q_poll:
    """)
    for ks in range(2):
        for b in range(4):
            r = 96 + 16*ks + 4*b
            a(f"buffer_load_dwordx4 v[{r}:{r+3}], v3, s[40:43], s{62+ks} offen offset:{1024*b} sc1")
    a("s_waitcnt vmcnt(0)\nv_xor_b32 v11, s67, v97")
    for r in range(99, 128, 2): a(f"v_bitop3_b32 v11, v11, v{r}, s67 bitop3:0xf6")
    a("""
    v_cmp_ne_u32 vcc, 0, v11
    s_cmp_eq_u64 vcc, 0
    s_cbranch_scc1 L_q_ok
    """)
    spin_tail("L_q_poll")
    a("L_q_ok:")
    for r in range(96, 112, 2): a(f"v_add_f32 v{r}, v{r}, v{r+16}")
    for b in range(4): a(f"v_cvt_pk_bf16_f32 v{96+4*b}, v{96+4*b}, v{98+4*b}")
    a("v_lshlrev_b32 v9, 2, v1")
    for b in range(4): a(f"ds_write_b32 v9, v{96+4*b} offset:{LDS_Q + 256*b}")
    a(f"""
    v_mov_b32 v10, 0
    v_mov_b32 v11, 1
    s_mov_b64 exec, 1
    global_atomic_add v10, v11, s[28:29] sc1
    s_mov_b64 exec, -1
    s_waitcnt lgkmcnt(0)
    s_barrier
    s_setprio 0
    s_branch L_pf
    """)

    a("L_job:")
    a(f"""
    s_sub_u32 s60, s2, {W_Q0}
    s_movk_i32 s65, 8192
    s_cmp_lt_u32 s2, {W_Q0}
    s_cselect_b32 s60, s2, s60
    s_cselect_b32 s44, s24, s10
    s_cselect_b32 s45, s25, s11
    s_cselect_b32 s65, 6144, s65
    s_lshl_b32 s46, s65, 9
    s_and_b32 s66, s60, 1
    s_lshr_b32 s60, s60, 1
    s_lshl_b32 s62, s66, 8
    s_lshl_b32 s63, s3, 5
    s_add_u32 s62, s62, s63
    s_mul_i32 s63, s62, s65
    s_lshl_b32 s64, s60, 8
    s_add_u32 s63, s63, s64
    s_lshl_b32 s64, s65, 3
    v_mul_lo_u32 v9, v4, s64
    v_lshl_add_u32 v9, v5, 4, v9
    s_lshl_b32 s64, s62, 1
    s_cmp_lt_u32 s2, {W_Q0}
    s_cbranch_scc0 L_jq
    v_lshlrev_b32 v10, 4, v4
    v_add_u32 v10, s64, v10
    global_load_dwordx4 v[92:95], v10, s[22:23]
    s_branch L_jw
    L_jq:
    v_and_b32 v10, 31, v1
    v_lshlrev_b32 v10, 1, v10
    v_add_u32 v10, s64, v10
    global_load_dwordx4 v[92:95], v3, s[4:5]
    global_load_ushort v112, v10, s[4:5]
    L_jw:
    """)
    for j in range(8):
        a(f"buffer_load_dwordx4 v[{224+4*j}:{227+4*j}], v9, s[44:47], s63 offen nt")
        if j < 7: a("s_add_u32 s63, s63, s65")
    a(f"""
    s_waitcnt vmcnt(8) lgkmcnt(0)
    s_mul_i32 s67, s48, 1664525
    s_add_u32 s67, s67, 1013904223
    """)
    for i in range(4): unpack(96 + 2*i, 92 + i)
    a(f"""
    s_cmp_lt_u32 s2, {W_Q0}
    s_cbranch_scc0 L_jq2
    """)
    for e in range(8): a(f"v_mul_f32 v{104+e}, s52, v{96+e}")
    for e in range(8): a(f"v_exp_f32 v{104+e}, -v{104+e}")
    for e in range(8): a(f"v_add_f32 v{104+e}, 1.0, v{104+e}")
    for e in range(8): a(f"v_rcp_f32 v{104+e}, v{104+e}")
    for e in range(8): a(f"v_mul_f32 v{96+e}, v{96+e}, v{104+e}")
    for m in range(4): a(f"v_cvt_pk_bf16_f32 v{72+m}, v{96+2*m}, v{97+2*m}")
    a("s_waitcnt vmcnt(0)")
    transpose(224, 192)
    a(f"""
    s_mul_i32 s64, s66, {3072*8}
    s_add_u32 s64, s64, {MODP}
    s_branch L_jg
    L_jq2:
    v_add_f32 v104, v96, v97
    v_add_f32 v105, v98, v99
    v_add_f32 v106, v100, v101
    v_add_f32 v107, v102, v103
    v_add_f32 v104, v104, v105
    v_add_f32 v106, v106, v107
    v_add_f32 v116, v104, v106
    """)
    rowred("add", [116]); xrowred("add", [116], [104])
    a(f"v_mul_f32 v116, {f32(1/512)}, v116")
    for e in range(8): a(f"v_sub_f32 v{104+e}, v{96+e}, v116")
    a("v_mul_f32 v113, v104, v104")
    for e in range(1, 8): a(f"v_fma_f32 v113, v{104+e}, v{104+e}, v113")
    rowred("add", [113]); xrowred("add", [113], [104])
    a(f"v_mul_f32 v113, {f32(1/512)}, v113\nv_lshlrev_b32 v112, 16, v112")
    rb_n([116, 113])
    a(f"v_add_f32 v113, {f32(1e-5)}, v113\nv_sub_f32 v112, v112, v116")
    rb_n([113, 112])
    a("v_sqrt_f32 v113, v113")
    rb_n([113])
    fdiv(114, 112, 113, 104, 105)
    rb_n([114])
    a(f"""
    v_and_b32 v10, 31, v1
    v_lshrrev_b32 v11, 5, v1
    v_lshl_add_u32 v10, v11, 9, v10
    v_add_u32 v10, s62, v10
    v_lshlrev_b32 v10, 3, v10
    s_mov_b32 s63, {MODP}
    s_mov_b32 s64, {MODP + 3072*8}
    s_waitcnt vmcnt(0)
    """)
    transpose(224, 192)
    a(f"""
    s_mov_b32 s61, {SPIN}
    L_m_poll:
    buffer_load_dwordx2 v[96:97], v10, s[40:43], s63 offen sc1
    buffer_load_dwordx2 v[98:99], v10, s[40:43], s64 offen sc1
    s_waitcnt vmcnt(0)
    v_xor_b32 v11, s67, v97
    v_bitop3_b32 v11, v11, v99, s67 bitop3:0xf6
    v_cmp_ne_u32 vcc, 0, v11
    s_cmp_eq_u64 vcc, 0
    s_cbranch_scc1 L_m_ok
    """)
    spin_tail("L_m_poll")
    a("L_m_ok:")
    stamp(8)
    a("v_add_f32 v96, v96, v98")
    rb_n([96])
    a("v_add_f32 v97, 1.0, v96")
    rb_n([97])
    a(f"""
    s_lshl_b32 s63, s3, 7
    s_add_u32 s63, s63, {LDS_H}
    v_lshlrev_b32 v10, 1, v1
    v_add_u32 v10, s63, v10
    v_lshlrev_b32 v11, 4, v4
    v_add_u32 v11, s63, v11
    v_permlane32_swap_b32 v97, v98
    v_mul_f32 v98, v114, v98
    """)
    rb_n([98])
    a(f"""
    v_add_f32 v98, v98, v96
    v_cvt_pk_bf16_f32 v98, v98, v98
    ds_write_b16 v10, v98
    s_mul_i32 s64, s66, {4096*8}
    s_add_u32 s64, s64, {QP}
    s_waitcnt lgkmcnt(0)
    ds_read_b128 v[72:75], v11
    s_waitcnt lgkmcnt(0)
    L_jg:
    """)
    mfma8(32, 72, 192)
    red_write()
    a(f"""
    s_cmp_lg_u32 s3, 0
    s_cbranch_scc1 L_kv
    v_lshlrev_b32 v9, 3, v1
    """)
    for k in range(8): a(f"ds_read_b64 v[{32+2*k}:{33+2*k}], v9 offset:{LDS_RED + 512*k}")
    a(f"""
    s_lshl_b32 s63, s60, 10
    s_add_u32 s64, s64, s63
    v_mov_b32 v93, s67
    v_mov_b32 v95, s67
    s_waitcnt lgkmcnt(0)
    """)
    for st in (8, 4):
        for b in range(32, 32 + st): a(f"v_add_f32 v{b}, v{b}, v{b+st}")
    a(f"""
    v_add_f32 v92, v32, v34
    v_add_f32 v94, v33, v35
    buffer_store_dwordx4 v[92:95], v3, s[40:43], s64 offen sc1
    """)
    stamp(9)
    a("s_branch L_helper2")
    a("L_end:\ns_endpgm")
    a.raw('.section .rodata,"a"\n.p2align 6')
    a.raw(f".amdhsa_kernel {KN}_kernel")
    a.raw("  .amdhsa_next_free_vgpr 256\n  .amdhsa_next_free_sgpr 102\n  .amdhsa_accum_offset 256")
    a.raw("  .amdhsa_group_segment_fixed_size 0\n  .amdhsa_kernarg_size 112\n  .amdhsa_user_sgpr_count 2")
    a.raw("  .amdhsa_user_sgpr_kernarg_segment_ptr 1\n  .amdhsa_system_sgpr_workgroup_id_x 1")
    a.raw("  .amdhsa_float_denorm_mode_32 3\n.end_amdhsa_kernel")
    return a.text()

if __name__ == "__main__":
    out = sys.argv[1] if len(sys.argv) > 1 else 'cdna_kernels/' + KN + '.s'
    open(out, "w").write(gen(stamps='--stamps' in sys.argv))
```
